```python
import torch

def _softmax(x, axis=-1):
    return torch.softmax(x, dim=axis)
def _gelu(x):
    return torch.nn.functional.gelu(x, approximate="tanh")
def _silu(x):
    return torch.nn.functional.silu(x)
def _sigmoid(x):
    return torch.sigmoid(x)
def _layernorm(x, axis=-1, eps=1e-5):
    m = x.mean(dim=axis, keepdim=True)
    v = x.var(dim=axis, keepdim=True, unbiased=False)
    return (x - m) / torch.sqrt(v + eps)
def _scatter_add(tgt, idx, src, axis=0):
    return tgt.clone().index_add_(axis, idx, src)
def _segment_sum(src, seg, n):
    out = torch.zeros((n,) + src.shape[1:], dtype=src.dtype)
    return out.index_add_(0, seg, src)
def _pad(x, pw):
    flat = tuple(v for pair in reversed(pw) for v in pair)
    return torch.nn.functional.pad(x, flat)

kernel_name = 'standalone__gqa_block_cached__near_ridge'

def setup_inputs():

    _w = (lambda a: (lambda t: t.to(torch.bfloat16) if t.is_floating_point() else t)(torch.as_tensor(a)))
    B, Sq, D = 8, 64, 512
    Hq, Hkv, Sk, Dh = 32, 8, 64, 128
    assert Hq % Hkv == 0, (Hq, Hkv)
    return {
        "x": _w((lambda *s: torch.randn(*s, dtype=torch.bfloat16) * 0.8)(B, Sq, D)),
        "k_cache": _w((lambda *s: torch.randn(*s, dtype=torch.bfloat16) * 0.8)(B, Hkv, Sk, Dh)),
        "v_cache": _w((lambda *s: torch.randn(*s, dtype=torch.bfloat16) * 0.05)(B, Hkv, Sk, Dh)),
        "wq": _w((lambda *s: torch.randn(*s, dtype=torch.bfloat16) * 0.8)(D, Hq * Dh) * (D ** -0.5)),
        "wo": _w((lambda *s: torch.randn(*s, dtype=torch.bfloat16) * 0.05)(Hq * Dh, D) * ((Hq * Dh) ** -0.5)),
    }

def reference(x, k_cache, v_cache, wq, wo):
    B, Sq, D = x.shape
    Hq, Dh = 32, 128
    Hkv = k_cache.shape[1]
    rep = Hq // Hkv
    q = (lambda x, *d: x.permute(*d))((x @ wq).reshape(B, Sq, Hq, Dh), 0, 2, 1, 3)
    k = (lambda x, n, axis: torch.repeat_interleave(x, n, dim=axis))(k_cache, rep, axis=1)
    v = (lambda x, n, axis: torch.repeat_interleave(x, n, dim=axis))(v_cache, rep, axis=1)
    scores = torch.einsum("bhqd,bhkd->bhqk", q, k) * (Dh ** -0.5)
    p = _softmax(scores, axis=-1)
    o = torch.einsum("bhqk,bhkd->bhqd", p, v)
    return (lambda x, *d: x.permute(*d))(o, 0, 2, 1, 3).reshape(B, Sq, Hq * Dh) @ wo
```

```python
import re

_REG = re.compile(r'(-?)(\|?)([vsa])(\d+|\[(\d+):(\d+)\])')

def regs_of(tok):
    tok = tok.strip()
    out = []
    m = re.fullmatch(r'-?\|?(?:abs\()?([vsa])(\d+)\)?\|?', tok)
    if m:
        return [(m.group(1), int(m.group(2)))]
    m = re.fullmatch(r'-?([vsa])\[(\d+):(\d+)\]', tok)
    if m:
        return [(m.group(1), i) for i in range(int(m.group(2)), int(m.group(3)) + 1)]
    if tok == 'vcc': return [('s', 'vcc')]
    if tok == 'exec': return [('s', 'exec')]
    if tok == 'm0': return [('s', 'm0')]
    return []

TRANS = ('v_exp_', 'v_log_', 'v_rcp_', 'v_rsq_', 'v_sqrt_', 'v_sin_', 'v_cos_')

class Ins:
    __slots__ = ('text', 'mn', 'kind', 'rd', 'wr', 'ws', 'comment', 'isdpp', 'wide_store', 'lds_dma', 'srcc', 'd')
    def __init__(self, text):
        self.text = text
        t = text.split(';')[0].strip()
        self.rd = set(); self.wr = set(); self.kind = 'other'; self.mn = ''
        self.ws = 1; self.isdpp = False; self.wide_store = False; self.lds_dma = False
        self.srcc = set(); self.d = set()
        if not t or t.endswith(':') or t.startswith('.'):
            self.kind = 'pseudo'; self.ws = 0
            return
        parts = t.split(None, 1)
        mn = parts[0]; self.mn = mn
        rest = parts[1] if len(parts) > 1 else ''
        ops = [o.strip() for o in rest.split(',')] if rest else []
        mods = ''
        if ops:
            last = ops[-1].split()
            ops[-1] = last[0] if last else ''
            mods = ' '.join(last[1:])
        R = lambda toks: set(r for tk in toks for r in regs_of(tk))
        if mn == 's_nop':
            self.kind = 'nop'; self.ws = int(ops[0], 0) + 1
        elif mn.startswith('v_mfma'):
            self.kind = 'mfma'
            self.wr = R(ops[:1]); self.rd = R(ops[1:4]); self.srcc = R(ops[3:4]); self.d = set(self.wr)
        elif mn.startswith('v_cmp'):
            self.kind = 'valu'; self.wr = R(ops[:1]); self.rd = R(ops[1:])
        elif mn.startswith('v_readfirstlane') or mn.startswith('v_readlane'):
            self.kind = 'valu'; self.wr = R(ops[:1]); self.rd = R(ops[1:])
        elif mn.startswith('v_permlane'):
            self.kind = 'valu'; self.wr = R(ops[:2]); self.rd = R(ops[:2])
        elif mn.startswith('v_'):
            self.kind = 'trans' if mn.startswith(TRANS) else 'valu'
            self.wr = R(ops[:1]); self.rd = R(ops[1:])
            if mn.startswith(('v_fmac', 'v_mac')) : self.rd |= self.wr
            if mn.startswith('v_cndmask') and len(ops) == 3: self.rd.add(('s', 'vcc'))
            if mn.startswith(('v_add_co', 'v_sub_co', 'v_addc_co')):
                self.wr = R(ops[:2]); self.rd = R(ops[2:])
            if 'dpp' in mn or 'row_' in mods or 'quad_perm' in mods: self.isdpp = True
        elif mn.startswith('ds_'):
            self.kind = 'ds'
            if mn.startswith('ds_read') or mn.startswith('ds_bpermute') or mn.startswith('ds_swizzle'):
                self.wr = R(ops[:1]); self.rd = R(ops[1:])
            else:
                self.rd = R(ops)
        elif mn.startswith('buffer_') or mn.startswith('global_'):
            self.kind = 'vmem'
            alltok = ops + mods.split()
            if ' lds' in (' ' + mods) or mods.endswith('lds') or 'load_lds' in mn:
                self.lds_dma = True; self.rd = R(ops); self.rd.add(('s', 'm0'))
            elif 'load' in mn:
                self.wr = R(ops[:1]); self.rd = R(ops[1:])
            elif 'atomic' in mn:
                self.rd = R(ops)
                if 'sc0' in mods: self.wr = R(ops[:1])
            else:
                self.rd = R(ops)
                if mn.endswith(('x3', 'x4')):
                    self.wide_store = True
                    self.d = R(ops[:1]) if mn.startswith('buffer_') else R(ops[1:2])
        elif mn.startswith('s_'):
            self.kind = 'salu'
            nodst = ('s_waitcnt', 's_barrier', 's_branch', 's_cbranch', 's_endpgm', 's_cmp', 's_setprio', 's_sleep', 's_bitcmp', 's_setreg')
            if mn.startswith(nodst):
                self.rd = R(ops)
            else:
                self.wr = R(ops[:1]); self.rd = R(ops[1:])
                if 'saveexec' in mn: self.wr.add(('s', 'exec')); self.rd.add(('s', 'exec'))
        else:
            raise ValueError('unknown instr: ' + text)

class Prog:
    def __init__(self):
        self.ins = []
        self.nbar = 0
    def __call__(self, text):
        for line in text.split('\n'):
            line = line.strip()
            if not line: continue
            i = Ins(line)
            if i.mn == 's_barrier': self.nbar += 1
            self.ins.append(i)
    def comment(self, s):
        self.ins.append(Ins('; ' + s))
    def extend(self, other):
        self.ins.extend(other.ins); self.nbar += other.nbar

def isv(r): return r[0] in ('v', 'a')

def need_states(p, c):
    n = 0
    pv = set(r for r in p.wr if isv(r)); ps = set(r for r in p.wr if not isv(r))
    cvr = set(r for r in c.rd if isv(r)); cvw = set(r for r in c.wr if isv(r)); csr = set(r for r in c.rd if not isv(r))
    pval = p.kind in ('valu', 'trans')
    cval = c.kind in ('valu', 'trans')
    if pval:
        if c.kind == 'mfma' and (pv & cvr): n = max(n, 2)
        if cval and c.mn.startswith('v_permlane') and (pv & cvr): n = max(n, 2)
        if cval and c.isdpp and (pv & cvr): n = max(n, 2)
        if cval and c.mn.startswith(('v_readfirstlane', 'v_readlane')) and (pv & cvr): n = max(n, 1)
        if p.kind == 'trans' and c.kind in ('valu',) and (pv & cvr): n = max(n, 1)
        if p.kind == 'trans' and c.kind == 'trans' and (pv & cvr): n = max(n, 1)
        if ps:
            if cval and (ps & csr): n = max(n, 4 if c.mn.startswith(('v_readlane', 'v_writelane')) else 2)
            if c.kind == 'vmem' and (ps & csr): n = max(n, 5)
            if c.kind == 'salu' and (ps & csr): n = max(n, 4)
    if p.kind == 'mfma':
        passes = 8 if '32x32' in p.mn else 4
        big = 12 if passes == 8 else 8
        if c.kind == 'mfma':
            ab = (c.rd - c.srcc) | set()
            abonly = set()
            toks = c.text.split(';')[0].split(None, 1)[1].split(',')
            for tk in toks[1:3]: abonly |= set(regs_of(tk.strip().split()[0]))
            if p.d & abonly: n = max(n, big)
            if p.d & c.srcc:
                if p.d != c.srcc: n = max(n, 10 if passes == 8 else 6)
            if (p.d & c.wr) and not (p.d == c.wr): n = max(n, big)
        else:
            if c.kind in ('valu', 'trans') and (p.d & (cvr | cvw)): n = max(n, big)
            if c.kind in ('ds', 'vmem') and (p.d & (cvr | cvw)): n = max(n, big)
            if c.kind in ('valu', 'trans') and (p.srcc & cvw): n = max(n, 7 if passes == 8 else 3)
    if p.kind == 'vmem' and p.wide_store:
        if cval and (p.d & cvw): n = max(n, 2)
        elif (p.d & cvw): n = max(n, 1)
    if p.kind == 'salu' and ('s', 'm0') in p.wr and c.kind == 'vmem' and c.lds_dma: n = max(n, 1)
    if p.kind == 'salu' and ('s', 'exec') in p.wr and cval and c.isdpp: n = max(n, 5)
    return n

def fix_hazards(ins, window=24):
    out = []
    nadded = 0
    for c in ins:
        if c.kind not in ('pseudo',):
            need = 0
            dist = 0
            for p in reversed(out):
                if p.kind == 'pseudo':
                    continue
                r = need_states(p, c)
                if r > dist: need = max(need, r - dist)
                dist += p.ws
                if dist >= 20: break
            while need > 0:
                k = min(need, 16)
                out.append(Ins('s_nop %d' % (k - 1))); nadded += k; need -= k
        out.append(c)
    return out, nadded

def render(ins):
    lines = []
    for i in ins:
        t = i.text
        if i.kind == 'pseudo': lines.append(t)
        else: lines.append('    ' + t)
    return '\n'.join(lines) + '\n'

class Lds:
    def __init__(self, P, maxout=15):
        self.P = P; self.fifo = []; self.maxout = maxout
    def issue(self, text, tag=None):
        if len(self.fifo) >= self.maxout:
            self.waitn(self.maxout - 1)
        self.P(text); self.fifo.append(tag)
    def waitn(self, n):
        if len(self.fifo) > n:
            self.P('s_waitcnt lgkmcnt(%d)' % n)
            self.fifo = self.fifo[len(self.fifo) - n:] if n > 0 else []
    def wait(self, tags):
        idx = -1
        for k, t in enumerate(self.fifo):
            if t in tags: idx = k
        if idx >= 0:
            self.waitn(len(self.fifo) - 1 - idx)
    def outstanding(self): return len(self.fifo)
```

```python
import sys, argparse
from asmlib import Prog, Lds, fix_hazards, render, Ins

KNAME = "standalone__gqa_block_cached__near_ridge_kernel"

class Cfg:
    NL = 4
    LA = 2
    WSOFF = 0
    DUMP = None
    STAMP = False
    SPIN = 1 << 16
    PFLAG_AT = 2
    POLL_AT = 5
    MAXOUT = 14
    PRIO = False

def Wslot(s): return 16384 * s
XV = 98304
def Xslot(s): return XV + 8192 * s
KB = XV + 49152
LDS_BYTES = 163840

EPOCH0 = 0
FLAG0 = 4096
PBASE = 65536
RBASE = 4 << 20
DBG0 = 16 << 20
STAMP0 = 24 << 20

sX, sK, sV, sWQ, sWO, sOUT, sWS = 20, 24, 28, 32, 36, 40, 44
sW, sO, sBH, sJ, sBL, sB, sH, sG, sROT, sNONCE = 48, 49, 50, 51, 52, 53, 54, 55, 56, 57
sT0, sT1, sT2, sT3, sT4, sT5 = 58, 59, 60, 61, 62, 63
sC = 64
def srd(b): return f"s[{b}:{b+3}]"
def vr(b, n): return f"v[{b}:{b+n-1}]" if n > 1 else f"v{b}"

def prologue(P, cfg):
    P("s_cmp_ge_u32 s2, 256")
    P("s_cbranch_scc1 L_end")
    if cfg.STAMP: P("s_memrealtime s[96:97]")
    for reg, off in ((sX, 0), (sWQ, 24), (sK, 8), (sV, 16), (sWO, 32), (sOUT, 40), (sWS, 56)):
        P(f"s_load_dwordx2 s[{reg}:{reg+1}], s[0:1], {off}")
    P("v_lshrrev_b32 v1, 6, v0")
    P("v_and_b32 v0, 63, v0")
    for reg, size in ((sX, 0x80000), (sWQ, 0x400000), (sK, 0x100000), (sV, 0x100000), (sWO, 0x400000), (sOUT, 0x80000), (sWS, 0x10000000)):
        P(f"s_mov_b32 s{reg+2}, {size:#x}")
        P(f"s_mov_b32 s{reg+3}, 0x20000")
    P(f"v_readfirstlane_b32 s{sW}, v1")
    P(f"s_and_b32 s{sT0}, s2, 7")
    P(f"s_lshr_b32 s{sO}, s{sT0}, 1")
    P(f"s_and_b32 s{sBH}, s{sT0}, 1")
    P(f"s_lshr_b32 s{sT1}, s2, 3")
    P(f"s_and_b32 s{sJ}, s{sT1}, 7")
    P(f"s_lshr_b32 s{sBL}, s{sT1}, 3")
    P(f"s_lshl_b32 s{sB}, s{sBH}, 2")
    P(f"s_add_u32 s{sB}, s{sB}, s{sBL}")
    P(f"s_lshl_b32 s{sH}, s{sO}, 3")
    P(f"s_add_u32 s{sH}, s{sH}, s{sJ}")
    P(f"s_lshr_b32 s{sG}, s{sH}, 2")
    P(f"s_lshl_b32 s{sROT}, s{sBL}, 1")
    P(f"s_add_u32 s{sROT}, s{sROT}, s{sBH}")
    P(f"s_cmp_ge_u32 s{sW}, 4")
    P("s_cbranch_scc1 L_loader")

def emit_jh(P, dst, i, tmp):
    P(f"s_add_u32 s{dst}, s{sJ}, {i}")
    P(f"s_and_b32 s{dst}, s{dst}, 3")
    P(f"s_and_b32 s{tmp}, s{sJ}, 4")
    if i & 4: P(f"s_xor_b32 s{tmp}, s{tmp}, 4")
    P(f"s_or_b32 s{dst}, s{dst}, s{tmp}")

def loader(cfg):
    P = Prog()
    NL = cfg.NL
    nW = 16 // NL; nX = 8 // NL
    P("L_loader:")
    sID = sT5
    P(f"s_sub_u32 s{sID}, s{sW}, 4")
    vW0, vW1, vX0, vX1, vK0, vO0, vO1 = 2, 3, 4, 5, 6, 10, 11
    vWc0, vWc1, vXc0, vXc1, vOc0, vOc1 = 12, 13, 14, 15, 16, 17
    P("v_lshrrev_b32 v20, 4, v0")
    P("v_and_b32 v21, 15, v0")
    P("v_lshlrev_b32 v22, 1, v20")
    P("v_xor_b32 v22, v21, v22")
    P("v_lshlrev_b32 v22, 4, v22")
    P("v_lshlrev_b32 v23, 13, v20")
    P(f"v_add_u32 v{vW0}, v22, v23")
    P(f"s_lshl_b32 s{sT0}, s{sH}, 8")
    P(f"s_mul_i32 s{sT1}, s{sID}, {nW*4*8192}")
    P(f"s_add_u32 s{sT0}, s{sT0}, s{sT1}")
    P(f"v_add_u32 v{vW0}, s{sT0}, v{vW0}")
    P(f"v_xor_b32 v{vW1}, 128, v{vW0}")
    P("v_xor_b32 v22, v21, v20")
    P("v_lshlrev_b32 v22, 4, v22")
    P("v_lshlrev_b32 v23, 8, v20")
    P(f"v_add_u32 v{vK0}, v22, v23")
    for k in range(1, 4):
        P(f"v_xor_b32 v{vK0+k}, {k<<6}, v{vK0}")
    P("v_lshrrev_b32 v20, 3, v0")
    P("v_and_b32 v21, 7, v0")
    P("v_lshrrev_b32 v22, 1, v20")
    P("v_xor_b32 v22, v21, v22")
    P("v_lshlrev_b32 v22, 4, v22")
    P("v_lshlrev_b32 v23, 10, v20")
    P(f"v_add_u32 v{vX0}, v22, v23")
    P(f"s_lshl_b32 s{sT0}, s{sB}, 16")
    P(f"s_mul_i32 s{sT1}, s{sID}, {nX*8192}")
    P(f"s_add_u32 s{sT0}, s{sT0}, s{sT1}")
    P(f"v_add_u32 v{vX0}, s{sT0}, v{vX0}")
    P(f"v_xor_b32 v{vX1}, 64, v{vX0}")
    P("v_and_b32 v22, 2, v20")
    P("v_xor_b32 v22, v21, v22")
    P("v_lshlrev_b32 v22, 4, v22")
    P(f"v_add_u32 v{vO0}, v22, v23")
    P(f"s_lshl_b32 s{sT0}, s{sJ}, 7")
    P(f"s_mul_i32 s{sT1}, s{sID}, {nW*8192}")
    P(f"s_add_u32 s{sT0}, s{sT0}, s{sT1}")
    P(f"v_add_u32 v{vO0}, s{sT0}, v{vO0}")
    P(f"v_xor_b32 v{vO1}, 64, v{vO0}")
    sCW = sC; sCR = sC + 16
    for k in range(nW):
        P(f"s_mov_b32 s{sCW+k}, {k*32768-(k&3)*1024}")
        P(f"s_mov_b32 s{sCR+k}, {k*8192-(k&3)*1024}")
    sLW, sLX = sT3, sT4
    P(f"s_mul_i32 s{sLW}, s{sID}, {nW*1024}")
    P(f"s_mul_i32 s{sLX}, s{sID}, {nX*1024}")
    sKT, sVF, sVS = 8, 9, 10
    P(f"s_lshl_b32 s{sKT}, s{sB}, 3")
    P(f"s_add_u32 s{sKT}, s{sKT}, s{sG}")
    P(f"s_lshl_b32 s{sKT}, s{sKT}, 14")
    P(f"s_add_u32 s{sKT}, s{sKT}, s{sLW}")
    P(f"s_xor_b32 s{sVS}, s{sKT}, 16384")
    P("s_waitcnt lgkmcnt(0)")
    if cfg.PRIO: P("s_setprio 1")

    groups = []
    def G(name, kind, arg, slot, after): groups.append(dict(name=name, kind=kind, arg=arg, slot=slot, after=after))
    for i in range(5): G(f"c{i}", 'c', i, i, -1)
    G("K", 'k', None, None, -1)
    G("c5", 'c', 5, 5, -1)
    G("c6", 'c', 6, 0, 2); G("c7", 'c', 7, 1, 3)
    G("Vf", 'v', 0, 2, 4)
    G("wo0", 'o', 0, 3, 5); G("wo1", 'o', 1, 4, 6); G("wo2", 'o', 2, 5, 7); G("wo3", 'o', 3, 0, 8)
    G("Vs", 'v', 1, 1, 9)
    G("wo4", 'o', 4, 2, 10); G("wo5", 'o', 5, 3, 11); G("wo6", 'o', 6, 4, 12); G("wo7", 'o', 7, 5, 13)
    idx = {g['name']: n for n, g in enumerate(groups)}
    need = {k: f"c{k}" for k in range(8)}
    need.update({8: "Vf", 9: "wo0", 10: "wo1", 11: "wo2", 12: "wo3", 13: "wo4", 14: "wo5", 15: "wo6", 16: "wo7"})
    NBAR = 18
    issued = []
    total = 0
    def m0(val_s, const):
        P(f"s_add_u32 s{sT0}, s{val_s}, {const}")
        P(f"s_mov_b32 m0, s{sT0}")
    def issue(g):
        nonlocal total
        n = 0
        if g['kind'] == 'c':
            i = g['arg']
            P(f"s_add_u32 s{sT1}, s{sROT}, {i}")
            P(f"s_and_b32 s{sT1}, s{sT1}, 7")
            P(f"s_lshl_b32 s{sT2}, s{sT1}, 19")
            P(f"v_add_u32 v{vWc0}, s{sT2}, v{vW0}")
            P(f"v_add_u32 v{vWc1}, s{sT2}, v{vW1}")
            P(f"s_lshl_b32 s{sT2}, s{sT1}, 7")
            P(f"v_add_u32 v{vXc0}, s{sT2}, v{vX0}")
            P(f"v_add_u32 v{vXc1}, s{sT2}, v{vX1}")
            for k in range(nX):
                if k % 4 == 0: m0(sLX, Xslot(g['slot']) + k * 1024)
                v = vXc1 if (k & 1) else vXc0
                P(f"buffer_load_dwordx4 v{v}, {srd(sX)}, s{sCR+k} offen offset:{(k&3)*1024} lds"); n += 1
            for k in range(nW):
                if k % 4 == 0: m0(sLW, Wslot(g['slot']) + k * 1024)
                v = vWc1 if ((k >> 1) & 1) else vWc0
                P(f"buffer_load_dwordx4 v{v}, {srd(sWQ)}, s{sCW+k} offen offset:{(k&3)*1024} lds"); n += 1
        elif g['kind'] in ('k', 'v'):
            base = KB if g['kind'] == 'k' else Wslot(g['slot'])
            sb = sKT if (g['kind'] == 'k' or g['arg'] == 0) else sVS
            rs = sK if g['kind'] == 'k' else sV
            for k in range(nW):
                if k % 4 == 0:
                    m0(sLW, base + k * 1024)
                    P(f"s_add_u32 s{sT1}, s{sb}, {k*1024}")
                P(f"buffer_load_dwordx4 v{vK0+(k&3)}, {srd(rs)}, s{sT1} offen offset:{(k&3)*1024} lds"); n += 1
        else:
            i = g['arg']
            emit_jh(P, sT1, i, sT2)
            P(f"s_lshl_b32 s{sT2}, s{sO}, 3")
            P(f"s_add_u32 s{sT1}, s{sT1}, s{sT2}")
            P(f"s_lshl_b32 s{sT1}, s{sT1}, 17")
            P(f"v_add_u32 v{vOc0}, s{sT1}, v{vO0}")
            P(f"v_add_u32 v{vOc1}, s{sT1}, v{vO1}")
            for k in range(nW):
                if k % 4 == 0: m0(sLW, Wslot(g['slot']) + k * 1024)
                v = vOc1 if (k & 1) else vOc0
                P(f"buffer_load_dwordx4 v{v}, {srd(sWO)}, s{sCR+k} offen offset:{(k&3)*1024} lds"); n += 1
        total += n
        issued.append(total)
    p = 0
    for k in range(NBAR):
        tgt = idx[need[k]] if k in need else p - 1
        lim = min(tgt + cfg.LA, len(groups) - 1)
        while p <= lim and groups[p]['after'] <= k - 1:
            issue(groups[p]); p += 1
        assert p > tgt, (k, need.get(k))
        if k in need:
            n = total - issued[tgt]
            assert n <= 63, n
            P(f"s_waitcnt vmcnt({n})")
        P(f"s_barrier")
    assert p == len(groups)
    P("s_endpgm")
    return P

ACC = 16; ART = 48; BX = 80; KF = 96; VF = 160; PF = 96
aW = 224; aX = 240; aV = 242; aO = 246; aF = 248; aFw = 252; vL16 = 253
BQ = 48; SACC = 64
WR = [48, 52, 56, 60, 80, 84, 88, 92]
ATMP = 64
OACC = 16; RSL = 32

class Item:
    def __init__(self, text, loads=(), post=(), pre=()):
        self.text = text; self.loads = list(loads); self.post = list(post); self.pre = list(pre)

class Load:
    def __init__(self, text, tag, not_before=-1, bar=False, early=0):
        self.text = text; self.tag = tag; self.not_before = not_before; self.bar = bar; self.early = early

def run_pipe(P, lds, items, loads, dmax=6, per_gap=3):
    first = {}
    for n, it in enumerate(items):
        for t in it.loads: first.setdefault(t, n)
    li = 0
    for n, it in enumerate(items):
        cnt = 0
        while li < len(loads):
            L = loads[li]
            if L.bar:
                nxt = next((x for x in loads[li+1:] if not x.bar), None)
                fu = first.get(nxt.tag, n) if nxt else n
                if L.not_before < n and (fu - n <= dmax + (nxt.early if nxt else 0)):
                    P("s_barrier"); li += 1; continue
                if fu <= n: raise RuntimeError("barrier blocked")
                break
            fu = first.get(L.tag, 10**9)
            forced = fu <= n
            if L.not_before >= n:
                assert not forced, (L.text, n)
                break
            if not forced:
                if fu - n > dmax + L.early: break
                if lds.outstanding() >= lds.maxout: break
                if cnt >= per_gap: break
            lds.issue(L.text, L.tag); cnt += 1; li += 1
        for t in it.pre: P(t)
        lds.wait(set(it.loads))
        P(it.text)
        for t in it.post:
            if callable(t): t()
            else: P(t)
    assert li == len(loads), (li, len(loads))

def mfma(d, a, b, c):
    cs = "0" if c is None else vr(c, 4)
    return f"v_mfma_f32_16x16x32_bf16 {vr(d,4)}, {vr(a,4)}, {vr(b,4)}, {cs}"

def dump(P, cfg, stage, regs):
    if cfg.DUMP != stage: return
    P(f"s_lshl_b32 s{sT0}, s2, 2")
    P(f"s_add_u32 s{sT0}, s{sT0}, s{sW}")
    P(f"s_lshl_b32 s{sT0}, s{sT0}, 14")
    P(f"s_add_u32 s{sT0}, s{sT0}, {DBG0 + cfg.WSOFF}")
    P("s_nop 7\ns_nop 7")
    for n, r in enumerate(regs):
        P(f"buffer_store_dwordx4 {vr(r,4)}, v{vL16}, {srd(sWS)}, s{sT0} offen offset:{(n%4)*1024}")
        if n % 4 == 3: P(f"s_add_u32 s{sT0}, s{sT0}, 4096")
    P("s_waitcnt vmcnt(0)")

def stamp(P, cfg, n):
    if cfg.STAMP: P(f"s_memrealtime s[{64+2*n}:{65+2*n}]") if False else None

def compute(cfg):
    P = Prog()
    lds = Lds(P, cfg.MAXOUT)
    P("s_waitcnt lgkmcnt(0)")
    P(f"s_lshl_b32 s{sT0}, s{sB}, 8")
    P(f"s_add_u32 s{sT0}, s{sT0}, {EPOCH0 + cfg.WSOFF}")
    P(f"s_load_dword s{sNONCE}, s[{sWS}:{sWS+1}], s{sT0}")
    P("v_and_b32 v1, 15, v0")
    P("v_lshrrev_b32 v2, 4, v0")
    P("v_bfe_u32 v3, v0, 2, 2")
    P("v_and_b32 v4, 3, v0")
    P(f"v_lshlrev_b32 v{vL16}, 4, v0")
    P("v_and_b32 v5, 1, v2")
    P("v_lshlrev_b32 v5, 2, v5")
    P("v_or_b32 v5, v5, v3")
    P("v_lshlrev_b32 v6, 3, v2")
    P("v_add_u32 v6, v6, v3")
    P("v_lshlrev_b32 v7, 8, v6")
    P("v_lshlrev_b32 v8, 5, v5")
    P("v_lshlrev_b32 v9, 3, v4")
    P("v_add3_u32 v7, v7, v8, v9")
    for u in range(8):
        P(f"v_xor_b32 v{aW+u}, {u<<5}, v7")
        P(f"v_add_u32 v{aW+8+u}, 0x10000, v{aW+u}")
    P("v_lshrrev_b32 v8, 1, v3")
    P("v_and_b32 v10, 1, v2")
    P("v_lshlrev_b32 v10, 1, v10")
    P("v_or_b32 v8, v8, v10")
    P(f"v_xor_b32 v8, s{sW}, v8")
    P("v_lshlrev_b32 v8, 5, v8")
    P("v_lshlrev_b32 v7, 7, v6")
    P(f"v_add3_u32 v{aO}, v7, v8, v9")
    P(f"v_add_u32 v{aO+1}, 0x10000, v{aO}")
    P(f"s_lshl_b32 s{sT0}, s{sW}, 11")
    P(f"s_add_u32 s{sT0}, s{sT0}, {XV}")
    P("v_lshrrev_b32 v8, 1, v1")
    P("v_xor_b32 v8, v8, v2")
    P("v_lshlrev_b32 v8, 4, v8")
    P("v_lshlrev_b32 v7, 7, v1")
    P(f"v_add3_u32 v{aX}, v7, v8, s{sT0}")
    P(f"v_xor_b32 v{aX+1}, 64, v{aX}")
    P("v_xor_b32 v8, v1, v2")
    P("v_lshlrev_b32 v8, 4, v8")
    P("v_lshlrev_b32 v7, 8, v1")
    P(f"v_add_u32 v{aV}, v7, v8")
    for s in range(1, 4):
        P(f"v_xor_b32 v{aV+s}, {s<<6}, v{aV}")
    for nt in range(4):
        P(f"s_add_u32 s{sT0}, s{sO}, {nt}")
        P(f"s_and_b32 s{sT0}, s{sT0}, 3")
        P(f"s_lshl_b32 s{sT0}, s{sT0}, 10")
        P(f"s_add_u32 s{sT0}, s{sT0}, {XV}")
        P(f"v_add_u32 v{aF+nt}, s{sT0}, v{vL16}")
    P(f"s_lshl_b32 s{sT0}, s{sW}, 10")
    P(f"s_add_u32 s{sT0}, s{sT0}, {XV}")
    P(f"v_add_u32 v{aFw}, s{sT0}, v{vL16}")
    aK = 8
    P("v_lshrrev_b32 v5, 1, v2")
    P("v_xor_b32 v5, v5, v1")
    P("v_lshlrev_b32 v5, 4, v5")
    P("v_and_b32 v6, 1, v2")
    P("v_lshlrev_b32 v6, 3, v6")
    P("v_lshlrev_b32 v7, 8, v1")
    P("v_add3_u32 v5, v5, v6, v7")
    P(f"v_add_u32 v5, {KB}, v5")
    for s in range(4):
        for sec in range(2):
            P(f"v_xor_b32 v{aK+2*s+sec}, {(4*s+2*sec)<<4}, v5")
    P("s_waitcnt lgkmcnt(0)")
    P(f"s_mul_i32 s{sNONCE}, s{sNONCE}, 0x9E3779B1")
    P(f"s_add_u32 s{sNONCE}, s{sNONCE}, 0x7F4A7C15")

    items = []; loads = []
    nring = 8
    kl = []
    for kt in range(4):
        for s in range(4):
            for sec in range(2):
                kl.append(Load(f"ds_read_b64 {vr(KF + (kt*4+s)*4 + 2*sec, 2)}, v{aK+2*s+sec} offset:{kt*4096}", ('K', kt, s, sec), early=10**6))
    kli = 0
    n = 0
    for i in range(8):
        slot = i % 6
        rng = 0 if slot < 4 else 1
        wb = Wslot(slot) - (0x10000 if rng else 0)
        loads.append(Load(None, None, bar=True))
        for t in range(2):
            bslot = (2 * i + t) % 3
            for u in range(8):
                a = ART + 4 * (n % nring)
                nb = n - nring
                need = []
                if u == 0:
                    tg = ('B', i, t)
                    loads.append(Load(f"ds_read_b128 {vr(BX+4*bslot,4)}, v{aX+t} offset:{Xslot(slot)-XV}", tg, not_before=n-17))
                for hf in range(2):
                    tg = ('A', i, t, u, hf)
                    loads.append(Load(f"ds_read_b64_tr_b16 {vr(a+2*hf,2)}, v{aW+8*rng+u} offset:{wb + t*8192 + hf*1024}", tg, not_before=nb))
                    need.append(tg)
                need.append(('B', i, t))
                if i in (5, 6) and kli < len(kl):
                    for _ in range(1):
                        L = kl[kli]; kli += 1
                        L.early = 0; L.tag2 = L.tag
                        loads.append(L)
                first = (i == 0 and t == 0)
                items.append(Item(mfma(ACC+4*u, a, BX+4*bslot, None if first else ACC+4*u), loads=need))
                n += 1
    assert kli == len(kl)
    run_pipe_k(P, lds, items, loads)

    for s in range(4):
        P(f"v_cvt_pk_bf16_f32 v{BQ+4*s+0}, v{ACC+8*s+0}, v{ACC+8*s+1}")
        P(f"v_cvt_pk_bf16_f32 v{BQ+4*s+1}, v{ACC+8*s+2}, v{ACC+8*s+3}")
        P(f"v_cvt_pk_bf16_f32 v{BQ+4*s+2}, v{ACC+8*s+4}, v{ACC+8*s+5}")
        P(f"v_cvt_pk_bf16_f32 v{BQ+4*s+3}, v{ACC+8*s+6}, v{ACC+8*s+7}")
    dump(P, cfg, 'Q', [BQ + 4*s for s in range(4)])
    lds.waitn(0)
    P("s_barrier")
    for kt in range(4):
        for s in range(4):
            P(mfma(SACC+4*kt, KF+(kt*4+s)*4, BQ+4*s, None if s == 0 else SACC+4*kt))
            n = kt*4+s
            lds.issue(f"ds_read_b128 {vr(VF+(n//4*0+ (n%4)*0)+4*(kt*4+s),4)}, v{aV+s} offset:{Wslot(2)+kt*4096}", ('V', 0, kt, s))
    dump(P, cfg, 'S', [SACC + 4*k for k in range(4)])
    c = (128 ** -0.5) * 1.4426950408889634
    import struct
    cbits = struct.unpack('<I', struct.pack('<f', c))[0]
    P(f"s_mov_b32 s{sT1}, {cbits:#x}")
    S = lambda k: f"v{SACC+k}"
    P(f"v_max3_f32 v1, {S(0)}, {S(1)}, {S(2)}")
    P(f"v_max3_f32 v2, {S(3)}, {S(4)}, {S(5)}")
    P(f"v_max3_f32 v3, {S(6)}, {S(7)}, {S(8)}")
    P(f"v_max3_f32 v4, {S(9)}, {S(10)}, {S(11)}")
    P(f"v_max3_f32 v5, {S(12)}, {S(13)}, {S(14)}")
    P(f"v_max3_f32 v1, v1, v2, {S(15)}")
    P(f"v_max3_f32 v3, v3, v4, v5")
    P(f"v_max_f32 v1, v1, v3")
    P("v_mov_b32 v2, v1")
    P("v_permlane16_swap_b32 v1, v2")
    P("v_max_f32 v1, v1, v2")
    P("v_mov_b32 v2, v1")
    P("v_permlane32_swap_b32 v1, v2")
    P("v_max_f32 v1, v1, v2")
    P(f"v_mul_f32 v1, s{sT1}, v1")
    for k in range(16):
        P(f"v_fma_f32 {S(k)}, {S(k)}, s{sT1}, -v1")
    for k in range(16):
        P(f"v_exp_f32 {S(k)}, {S(k)}")
    P(f"v_add_f32 v1, {S(0)}, {S(1)}")
    P(f"v_add_f32 v2, {S(2)}, {S(3)}")
    P(f"v_add_f32 v3, {S(4)}, {S(5)}")
    P(f"v_add_f32 v4, {S(6)}, {S(7)}")
    for q in range(2):
        P(f"v_add_f32 v1, v1, {S(8+4*q)}")
        P(f"v_add_f32 v2, v2, {S(9+4*q)}")
        P(f"v_add_f32 v3, v3, {S(10+4*q)}")
        P(f"v_add_f32 v4, v4, {S(11+4*q)}")
    P("v_add_f32 v1, v1, v2")
    P("v_add_f32 v3, v3, v4")
    P("v_add_f32 v1, v1, v3")
    P("v_mov_b32 v2, v1")
    P("v_permlane16_swap_b32 v1, v2")
    P("v_add_f32 v1, v1, v2")
    P("v_mov_b32 v2, v1")
    P("v_permlane32_swap_b32 v1, v2")
    P("v_add_f32 v1, v1, v2")
    P("v_rcp_f32 v1, v1")
    for k in range(16):
        P(f"v_mul_f32 {S(k)}, {S(k)}, v1")
    for k in range(8):
        P(f"v_cvt_pk_bf16_f32 v{PF+k}, {S(2*k)}, {S(2*k+1)}")
    sPO = 64
    P(f"s_lshl_b32 s{sPO}, s{sB}, 5")
    P(f"s_add_u32 s{sPO}, s{sPO}, s{sH}")
    P(f"s_lshl_b32 s{sPO}, s{sPO}, 2")
    P(f"s_add_u32 s{sPO}, s{sPO}, s{sW}")
    P(f"s_lshl_b32 s{sPO}, s{sPO}, 11")
    P(f"s_add_u32 s{sPO}, s{sPO}, {PBASE + cfg.WSOFF}")
    P(f"buffer_store_dwordx4 {vr(PF,4)}, v{vL16}, {srd(sWS)}, s{sPO} offen sc1")
    P(f"buffer_store_dwordx4 {vr(PF+4,4)}, v{vL16}, {srd(sWS)}, s{sPO} offen offset:1024 sc1")
    dump(P, cfg, 'P', [PF, PF+4])

    sFL = 65
    P(f"s_lshl_b32 s{sFL}, s{sB}, 2")
    P(f"s_add_u32 s{sFL}, s{sFL}, s{sO}")
    P(f"s_lshl_b32 s{sFL}, s{sFL}, 2")
    P(f"s_add_u32 s{sFL}, s{sFL}, s{sW}")
    P(f"s_lshl_b32 s{sFL}, s{sFL}, 7")
    P(f"s_add_u32 s{sFL}, s{sFL}, {FLAG0 + cfg.WSOFF}")

    def publish_flag():
        P.comment("publish P flag")
        P("s_waitcnt vmcnt(0)")
        P(f"s_lshl_b32 s{sT0}, s{sJ}, 2")
        P(f"s_add_u32 s{sT0}, s{sT0}, s{sFL}")
        P(f"v_mov_b32 v1, s{sNONCE}")
        P("v_mov_b32 v2, 0")
        P("s_mov_b64 exec, 1")
        P(f"buffer_store_dword v1, v2, {srd(sWS)}, s{sT0} offen sc1")
        P("s_mov_b64 exec, -1")
    def poll_and_load():
        P.comment("poll P flags, then load P fragments")
        P("v_and_b32 v2, 7, v0")
        P("v_lshlrev_b32 v2, 2, v2")
        P(f"s_mov_b32 s{sT2}, {cfg.SPIN}")
        P("L_poll1:")
        P(f"buffer_load_dword v1, v2, {srd(sWS)}, s{sFL} offen sc1")
        P(f"s_sub_u32 s{sT2}, s{sT2}, 1")
        P("s_waitcnt vmcnt(0)")
        P(f"v_cmp_ne_u32 vcc, s{sNONCE}, v1")
        P(f"s_cmp_eq_u32 s{sT2}, 0")
        P("s_cbranch_scc1 L_poll1_done")
        P("s_cbranch_vccnz L_poll1")
        P("L_poll1_done:")
        for i in range(1, 8):
            emit_jh(P, sT0, i, sT1)
            P(f"s_sub_u32 s{sT0}, s{sT0}, s{sJ}")
            P(f"s_lshl_b32 s{sT0}, s{sT0}, 13")
            P(f"s_add_u32 s{sT0}, s{sT0}, s{sPO}")
            P(f"buffer_load_dwordx4 {vr(PF+8*i,4)}, v{vL16}, {srd(sWS)}, s{sT0} offen sc1")
            P(f"buffer_load_dwordx4 {vr(PF+8*i+4,4)}, v{vL16}, {srd(sWS)}, s{sT0} offen offset:1024 sc1")

    items = []; loads = []
    VACC = [16, 32]
    def vw_post(i):
        va = VACC[i & 1]
        out = []
        for sp in range(2):
            for k in range(2):
                out.append(f"v_cvt_pk_bf16_f32 v{ATMP+4*sp+2*k}, v{va+8*sp+4*k}, v{va+8*sp+4*k+1}")
                out.append(f"v_cvt_pk_bf16_f32 v{ATMP+4*sp+2*k+1}, v{va+8*sp+4*k+2}, v{va+8*sp+4*k+3}")
        return out
    def vw_write(i, sp):
        return lambda: lds.issue(f"ds_write_b128 v{aFw}, {vr(ATMP+4*sp,4)} offset:{8192*i + 4096*sp}", ('W', i, sp))
    wslot = [3, 4, 5, 0, 2, 3, 4, 5]
    n = 0; fr = 0
    for i in range(8):
        slot = wslot[i]
        rng = 0 if slot < 4 else 1
        wb = Wslot(slot) - (0x10000 if rng else 0)
        loads.append(Load(None, None, bar=True))
        for s in range(4):
            wr = WR[fr % 8]
            nb = (fr - 8) * 4 + 3 if fr >= 8 else -1
            for hf in range(2):
                loads.append(Load(f"ds_read_b64_tr_b16 {vr(wr+2*hf,2)}, v{aO+rng} offset:{wb + s*4096 + hf*512}", ('O', i, s, hf), not_before=nb))
            for kt in range(4):
                need = [('O', i, s, 0), ('O', i, s, 1)]
                if i == 0: need.append(('V', 0, kt, s))
                if i == 4:
                    tg = ('V', 1, kt, s)
                    loads.append(Load(f"ds_read_b128 {vr(VF+4*(kt*4+s),4)}, v{aV+s} offset:{Wslot(1)+kt*4096}", tg, not_before=n-16))
                    need.append(tg)
                post = []; pre = []
                if i >= 1 and s == 0 and kt == 3: post += vw_post(i-1)
                if i >= 1 and s == 1 and kt == 0: post += [vw_write(i-1, 0), vw_write(i-1, 1)]
                if s == 1 and kt == 2 and i == cfg.PFLAG_AT: post.append(publish_flag)
                if s == 1 and kt == 2 and i == cfg.POLL_AT: post.append(poll_and_load)
                items.append(Item(mfma(VACC[i&1]+4*kt, VF+4*(kt*4+s), wr, None if s == 0 else VACC[i&1]+4*kt), loads=need, post=post))
                n += 1
            fr += 1
    run_pipe(P, lds, items, loads, dmax=12, per_gap=2)
    for t in vw_post(7): P(t)
    vw_write(7, 0)(); vw_write(7, 1)()
    if cfg.DUMP == 'VW':
        pass
    lds.waitn(0)
    P("s_barrier")
    if cfg.DUMP == 'VW':
        for n_, (i, sp, nt) in enumerate([(i, sp, nt) for i in range(2) for sp in range(2) for nt in range(4)]):
            P(f"ds_read_b128 {vr(VF+4*n_,4)}, v{aF+nt} offset:{8192*i+4096*sp}")
        P("s_waitcnt lgkmcnt(0)")
        dump(P, cfg, 'VW', [VF+4*k for k in range(16)])
    P("s_waitcnt vmcnt(0)")
    dump(P, cfg, 'PALL', [PF+4*k for k in range(16)])
    items = []; loads = []
    n = 0
    order = [(i, sp, nt) for i in range(7) for sp in range(2) for nt in range(4)]
    order += [(7, sp, nt) for nt in (1, 2, 3, 0) for sp in range(2)]
    started = set()
    sTG = 68
    P(f"s_and_b32 s{sTG}, s{sNONCE}, 0xfff")
    P(f"s_bfe_u32 s{sTG+1}, s{sNONCE}, 0xc000c")
    P(f"s_lshr_b32 s{sTG+2}, s{sNONCE}, 24")
    P(f"s_or_b32 s{sTG+2}, s{sTG+2}, 0xa00")
    P(f"s_mul_i32 s{sTG+3}, s{sNONCE}, 0x85EBCA6B")
    P(f"s_lshr_b32 s{sTG+3}, s{sTG+3}, 20")
    P("v_mov_b32 v15, 0xfff")
    sRB = 66
    P(f"s_lshl_b32 s{sRB}, s{sB}, 3")
    P(f"s_add_u32 s{sRB}, s{sRB}, s{sJ}")
    P(f"s_lshl_b32 s{sRB}, s{sRB}, 16")
    P(f"s_lshl_b32 s{sT0}, s{sW}, 10")
    P(f"s_add_u32 s{sRB}, s{sRB}, s{sT0}")
    P(f"s_add_u32 s{sRB}, s{sRB}, {RBASE + cfg.WSOFF}")
    def rs_store(nt):
        def f():
            P.comment(f"RS store tile {nt}")
            P(f"s_add_u32 s{sT0}, s{sO}, {nt}")
            P(f"s_and_b32 s{sT0}, s{sT0}, 3")
            P(f"s_lshl_b32 s{sT0}, s{sT0}, 2")
            P(f"s_add_u32 s{sT0}, s{sT0}, s{sO}")
            P(f"s_lshl_b32 s{sT0}, s{sT0}, 12")
            P(f"s_add_u32 s{sT0}, s{sT0}, s{sRB}")
            for e in range(4):
                P(f"v_bfi_b32 v{OACC+4*nt+e}, v15, s{sTG+e}, v{OACC+4*nt+e}")
            P(f"buffer_store_dwordx4 {vr(OACC+4*nt,4)}, v{vL16}, {srd(sWS)}, s{sT0} offen sc1")
        return f
    for (i, sp, nt) in order:
        a = WR[n % 8]
        tg = ('F', i, sp, nt)
        loads.append(Load(f"ds_read_b128 {vr(a,4)}, v{aF+nt} offset:{8192*i+4096*sp}", tg, not_before=n-8))
        first = nt not in started; started.add(nt)
        items.append(Item(mfma(OACC+4*nt, a, PF+8*i+4*sp, None if first else OACC+4*nt), loads=[tg]))
        n += 1
    run_pipe(P, lds, items, loads, dmax=6, per_gap=2)
    dump(P, cfg, 'O', [OACC + 4*k for k in range(4)])
    for nt in (1, 2, 3): rs_store(nt)()
    for k in range(1, 4):
        P(f"s_add_u32 s{sT0}, s{sO}, {k}")
        P(f"s_and_b32 s{sT0}, s{sT0}, 3")
        P(f"s_lshl_b32 s{sT1}, s{sO}, 2")
        P(f"s_add_u32 s{sT0}, s{sT0}, s{sT1}")
        P(f"s_lshl_b32 s{sT0}, s{sT0}, 12")
        P(f"s_add_u32 s{72+k}, s{sT0}, s{sRB}")
    P(f"s_mov_b32 s{sT2}, {cfg.SPIN}")
    P("L_poll2:")
    for k in range(1, 4):
        P(f"buffer_load_dwordx4 {vr(RSL+4*(k-1),4)}, v{vL16}, {srd(sWS)}, s{72+k} offen sc1")
    P(f"s_sub_u32 s{sT2}, s{sT2}, 1")
    P("s_waitcnt vmcnt(0)")
    for e in range(4):
        P(f"v_xor_b32 v{1+e}, s{sTG+e}, v{RSL+e}")
    for k in range(1, 3):
        for e in range(4):
            P(f"v_xor_b32 v5, s{sTG+e}, v{RSL+4*k+e}")
            P(f"v_or_b32 v{1+e}, v{1+e}, v5")
    P("v_or3_b32 v1, v1, v2, v3")
    P("v_or_b32 v1, v1, v4")
    P("v_and_b32 v1, v15, v1")
    P("v_cmp_ne_u32 vcc, 0, v1")
    P(f"s_cmp_eq_u32 s{sT2}, 0")
    P("s_cbranch_scc1 L_poll2_done")
    P("s_cbranch_vccnz L_poll2")
    P("L_poll2_done:")
    for e in range(4):
        P(f"v_add_f32 v{OACC+e}, v{OACC+e}, v{RSL+e}")
        P(f"v_add_f32 v{RSL+4+e}, v{RSL+4+e}, v{RSL+8+e}")
    for e in range(4):
        P(f"v_add_f32 v{OACC+e}, v{OACC+e}, v{RSL+4+e}")
    P(f"v_cvt_pk_bf16_f32 v2, v{OACC}, v{OACC+1}")
    P(f"v_cvt_pk_bf16_f32 v3, v{OACC+2}, v{OACC+3}")
    P("v_and_b32 v4, 15, v0")
    P("v_lshrrev_b32 v5, 4, v0")
    P("v_lshlrev_b32 v4, 10, v4")
    P("v_lshlrev_b32 v5, 3, v5")
    P("v_add_u32 v4, v4, v5")
    P(f"s_lshl_b32 s{sT0}, s{sB}, 16")
    P(f"s_lshl_b32 s{sT1}, s{sW}, 14")
    P(f"s_add_u32 s{sT0}, s{sT0}, s{sT1}")
    P(f"s_lshl_b32 s{sT1}, s{sJ}, 7")
    P(f"s_add_u32 s{sT0}, s{sT0}, s{sT1}")
    P(f"s_lshl_b32 s{sT1}, s{sO}, 5")
    P(f"s_add_u32 s{sT0}, s{sT0}, s{sT1}")
    P(f"buffer_store_dwordx2 v[2:3], v4, {srd(sOUT)}, s{sT0} offen")
    P(f"s_or_b32 s{sT0}, s{sO}, s{sJ}")
    P(f"s_or_b32 s{sT0}, s{sT0}, s{sW}")
    P(f"s_cmp_lg_u32 s{sT0}, 0")
    P("s_cbranch_scc1 L_end")
    P(f"s_lshl_b32 s{sT0}, s{sB}, 8")
    P(f"s_add_u32 s{sT0}, s{sT0}, {EPOCH0 + cfg.WSOFF}")
    P(f"v_mov_b32 v1, s{sNONCE}")
    P("v_mov_b32 v5, 0")
    P("s_mov_b64 exec, 1")
    P(f"buffer_store_dword v1, v5, {srd(sWS)}, s{sT0} offen")
    return P

def run_pipe_k(P, lds, items, loads, dmax=6, per_gap=3):
    first = {}
    for n, it in enumerate(items):
        for t in it.loads: first.setdefault(t, n)
    li = 0
    for n, it in enumerate(items):
        cnt = 0
        while li < len(loads):
            L = loads[li]
            if L.bar:
                nxt = next((x for x in loads[li+1:] if not x.bar), None)
                fu = first.get(nxt.tag, n)
                if fu - n <= dmax:
                    P("s_barrier"); li += 1; continue
                break
            fu = first.get(L.tag, None)
            if fu is None:
                if lds.outstanding() >= lds.maxout and not any(first.get(x.tag, 10**9) <= n for x in loads[li:li+6]): break
                lds.issue(L.text, L.tag); li += 1; continue
            forced = fu <= n
            if L.not_before >= n:
                assert not forced, (L.text, n)
                break
            if not forced:
                if fu - n > dmax: break
                if lds.outstanding() >= lds.maxout: break
                if cnt >= per_gap: break
            lds.issue(L.text, L.tag); cnt += 1; li += 1
        lds.wait(set(it.loads))
        P(it.text)
    while li < len(loads):
        L = loads[li]; assert not L.bar; lds.issue(L.text, L.tag); li += 1

def build(cfg):
    P = Prog()
    prologue(P, cfg)
    C = compute(cfg)
    Ld = loader(cfg)
    assert C.nbar == Ld.nbar, (C.nbar, Ld.nbar)
    P.extend(C)
    P("L_end:")
    P("s_endpgm")
    P.extend(Ld)
    ins, nadd = fix_hazards(P.ins)
    nthreads = 256 + 64 * cfg.NL
    head = f"""; Fused GQA block: Q-projection + attention probabilities, V*Wo precompute, output projection.
; @launch grid=(256,1,1) block=({nthreads},1,1) lds={LDS_BYTES}
.amdgcn_target "amdgcn-amd-amdhsa--gfx950"
.text
.globl {KNAME}
.p2align 8
.type {KNAME},@function
{KNAME}:
"""
    tail = f""".section .rodata,"a"
.p2align 6
.amdhsa_kernel {KNAME}
  .amdhsa_next_free_vgpr 256
  .amdhsa_next_free_sgpr 102
  .amdhsa_accum_offset 256
  .amdhsa_group_segment_fixed_size 0
  .amdhsa_kernarg_size 64
  .amdhsa_user_sgpr_count 2
  .amdhsa_user_sgpr_kernarg_segment_ptr 1
  .amdhsa_system_sgpr_workgroup_id_x 1
.end_amdhsa_kernel
"""
    return head + render(ins) + tail, nadd, len([i for i in ins if i.kind != 'pseudo'])

if __name__ == "__main__":
    ap = argparse.ArgumentParser()
    ap.add_argument("-o", default="k.s")
    ap.add_argument("--set", action="append", default=[])
    a = ap.parse_args()
    cfg = Cfg()
    for kv in a.set:
        k, v = kv.split("=")
        cur = getattr(cfg, k)
        setattr(cfg, k, v if (cur is None or isinstance(cur, str)) else type(cur)(int(v, 0)))
    s, nadd, nins = build(cfg)
    open(a.o, "w").write(s)
    print(f"wrote {a.o}: {nins} instructions, {nadd} nop states added")
```

```python
import sys, argparse
from asmlib import Prog, Lds, fix_hazards, render, Ins

KNAME = "standalone__gqa_block_cached__near_ridge_kernel"

class Cfg:
    NL = 4
    LA = 2
    WSOFF = 0
    DUMP = None
    STAMP = False
    SPIN = 1 << 16
    PFLAG_AT = 2
    POLL_AT = 5
    MAXOUT = 14
    PRIO = False

def Wslot(s): return 16384 * s
XV = 98304
def Xslot(s): return XV + 8192 * s
KB = XV + 49152
LDS_BYTES = 163840

EPOCH0 = 0
FLAG0 = 4096
PBASE = 65536
RBASE = 4 << 20
DBG0 = 16 << 20
STAMP0 = 24 << 20

sX, sK, sV, sWQ, sWO, sOUT, sWS = 20, 24, 28, 32, 36, 40, 44
sW, sO, sBH, sJ, sBL, sB, sH, sG, sROT, sNONCE = 48, 49, 50, 51, 52, 53, 54, 55, 56, 57
sT0, sT1, sT2, sT3, sT4, sT5 = 58, 59, 60, 61, 62, 63
sC = 64
def srd(b): return f"s[{b}:{b+3}]"
def vr(b, n): return f"v[{b}:{b+n-1}]" if n > 1 else f"v{b}"

def prologue(P, cfg):
    P("s_cmp_ge_u32 s2, 256")
    P("s_cbranch_scc1 L_end")
    stamp(P, cfg, 0)
    for reg, off in ((sX, 0), (sWQ, 24), (sK, 8), (sV, 16), (sWO, 32), (sOUT, 40), (sWS, 56)):
        P(f"s_load_dwordx2 s[{reg}:{reg+1}], s[0:1], {off}")
    P("v_lshrrev_b32 v1, 6, v0")
    P("v_and_b32 v0, 63, v0")
    for reg, size in ((sX, 0x80000), (sWQ, 0x400000), (sK, 0x100000), (sV, 0x100000), (sWO, 0x400000), (sOUT, 0x80000), (sWS, 0x10000000)):
        P(f"s_mov_b32 s{reg+2}, {size:#x}")
        P(f"s_mov_b32 s{reg+3}, 0x20000")
    P(f"v_readfirstlane_b32 s{sW}, v1")
    P(f"s_and_b32 s{sT0}, s2, 7")
    P(f"s_lshr_b32 s{sO}, s{sT0}, 1")
    P(f"s_and_b32 s{sBH}, s{sT0}, 1")
    P(f"s_lshr_b32 s{sT1}, s2, 3")
    P(f"s_and_b32 s{sJ}, s{sT1}, 7")
    P(f"s_lshr_b32 s{sBL}, s{sT1}, 3")
    P(f"s_lshl_b32 s{sB}, s{sBH}, 2")
    P(f"s_add_u32 s{sB}, s{sB}, s{sBL}")
    P(f"s_lshl_b32 s{sH}, s{sO}, 3")
    P(f"s_add_u32 s{sH}, s{sH}, s{sJ}")
    P(f"s_lshr_b32 s{sG}, s{sH}, 2")
    P(f"s_lshl_b32 s{sROT}, s{sBL}, 1")
    P(f"s_add_u32 s{sROT}, s{sROT}, s{sBH}")
    P(f"s_cmp_ge_u32 s{sW}, 4")
    P("s_cbranch_scc1 L_loader")

def emit_jh(P, dst, i, tmp):
    P(f"s_add_u32 s{dst}, s{sJ}, {i}")
    P(f"s_and_b32 s{dst}, s{dst}, 3")
    P(f"s_and_b32 s{tmp}, s{sJ}, 4")
    if i & 4: P(f"s_xor_b32 s{tmp}, s{tmp}, 4")
    P(f"s_or_b32 s{dst}, s{dst}, s{tmp}")

def loader(cfg):
    P = Prog()
    NL = cfg.NL
    nW = 16 // NL; nX = 8 // NL
    P("L_loader:")
    sID = sT5
    if cfg.STAMP: P("s_waitcnt lgkmcnt(0)")
    P(f"s_sub_u32 s{sID}, s{sW}, 4")
    vW0, vW1, vX0, vX1, vK0, vO0, vO1 = 2, 3, 4, 5, 6, 10, 11
    vWc0, vWc1, vXc0, vXc1, vOc0, vOc1 = 12, 13, 14, 15, 16, 17
    P("v_lshrrev_b32 v20, 4, v0")
    P("v_and_b32 v21, 15, v0")
    P("v_lshlrev_b32 v22, 1, v20")
    P("v_xor_b32 v22, v21, v22")
    P("v_lshlrev_b32 v22, 4, v22")
    P("v_lshlrev_b32 v23, 13, v20")
    P(f"v_add_u32 v{vW0}, v22, v23")
    P(f"s_lshl_b32 s{sT0}, s{sH}, 8")
    P(f"s_mul_i32 s{sT1}, s{sID}, {nW*4*8192}")
    P(f"s_add_u32 s{sT0}, s{sT0}, s{sT1}")
    P(f"v_add_u32 v{vW0}, s{sT0}, v{vW0}")
    P(f"v_xor_b32 v{vW1}, 128, v{vW0}")
    P("v_xor_b32 v22, v21, v20")
    P("v_lshlrev_b32 v22, 4, v22")
    P("v_lshlrev_b32 v23, 8, v20")
    P(f"v_add_u32 v{vK0}, v22, v23")
    for k in range(1, 4):
        P(f"v_xor_b32 v{vK0+k}, {k<<6}, v{vK0}")
    P("v_lshrrev_b32 v20, 3, v0")
    P("v_and_b32 v21, 7, v0")
    P("v_lshrrev_b32 v22, 1, v20")
    P("v_xor_b32 v22, v21, v22")
    P("v_lshlrev_b32 v22, 4, v22")
    P("v_lshlrev_b32 v23, 10, v20")
    P(f"v_add_u32 v{vX0}, v22, v23")
    P(f"s_lshl_b32 s{sT0}, s{sB}, 16")
    P(f"s_mul_i32 s{sT1}, s{sID}, {nX*8192}")
    P(f"s_add_u32 s{sT0}, s{sT0}, s{sT1}")
    P(f"v_add_u32 v{vX0}, s{sT0}, v{vX0}")
    P(f"v_xor_b32 v{vX1}, 64, v{vX0}")
    P("v_and_b32 v22, 2, v20")
    P("v_xor_b32 v22, v21, v22")
    P("v_lshlrev_b32 v22, 4, v22")
    P(f"v_add_u32 v{vO0}, v22, v23")
    P(f"s_lshl_b32 s{sT0}, s{sJ}, 7")
    P(f"s_mul_i32 s{sT1}, s{sID}, {nW*8192}")
    P(f"s_add_u32 s{sT0}, s{sT0}, s{sT1}")
    P(f"v_add_u32 v{vO0}, s{sT0}, v{vO0}")
    P(f"v_xor_b32 v{vO1}, 64, v{vO0}")
    sCW = sC; sCR = sC + 16
    for k in range(nW):
        P(f"s_mov_b32 s{sCW+k}, {k*32768-(k&3)*1024}")
        P(f"s_mov_b32 s{sCR+k}, {k*8192-(k&3)*1024}")
    sLW, sLX = sT3, sT4
    P(f"s_mul_i32 s{sLW}, s{sID}, {nW*1024}")
    P(f"s_mul_i32 s{sLX}, s{sID}, {nX*1024}")
    sKT, sVF, sVS = 8, 9, 10
    P(f"s_lshl_b32 s{sKT}, s{sB}, 3")
    P(f"s_add_u32 s{sKT}, s{sKT}, s{sG}")
    P(f"s_lshl_b32 s{sKT}, s{sKT}, 14")
    P(f"s_add_u32 s{sKT}, s{sKT}, s{sLW}")
    P(f"s_xor_b32 s{sVS}, s{sKT}, 16384")
    P("s_waitcnt lgkmcnt(0)")
    if cfg.PRIO: P("s_setprio 1")

    groups = []
    def G(name, kind, arg, slot, after): groups.append(dict(name=name, kind=kind, arg=arg, slot=slot, after=after))
    for i in range(5): G(f"c{i}", 'c', i, i, -1)
    G("K", 'k', None, None, -1)
    G("c5", 'c', 5, 5, -1)
    G("c6", 'c', 6, 0, 2); G("c7", 'c', 7, 1, 3)
    G("Vf", 'v', 0, 2, 4)
    G("wo0", 'o', 0, 3, 5); G("wo1", 'o', 1, 4, 6); G("wo2", 'o', 2, 5, 7); G("wo3", 'o', 3, 0, 8)
    G("Vs", 'v', 1, 1, 9)
    G("wo4", 'o', 4, 2, 10); G("wo5", 'o', 5, 3, 11); G("wo6", 'o', 6, 4, 12); G("wo7", 'o', 7, 5, 13)
    idx = {g['name']: n for n, g in enumerate(groups)}
    need = {k: f"c{k}" for k in range(8)}
    need.update({8: "Vf", 9: "wo0", 10: "wo1", 11: "wo2", 12: "wo3", 13: "wo4", 14: "wo5", 15: "wo6", 16: "wo7"})
    NBAR = 18
    issued = []
    total = 0
    def m0(val_s, const):
        P(f"s_add_u32 s{sT0}, s{val_s}, {const}")
        P(f"s_mov_b32 m0, s{sT0}")
    def issue(g):
        nonlocal total
        n = 0
        if g['kind'] == 'c':
            i = g['arg']
            P(f"s_add_u32 s{sT1}, s{sROT}, {i}")
            P(f"s_and_b32 s{sT1}, s{sT1}, 7")
            P(f"s_lshl_b32 s{sT2}, s{sT1}, 19")
            P(f"v_add_u32 v{vWc0}, s{sT2}, v{vW0}")
            P(f"v_add_u32 v{vWc1}, s{sT2}, v{vW1}")
            P(f"s_lshl_b32 s{sT2}, s{sT1}, 7")
            P(f"v_add_u32 v{vXc0}, s{sT2}, v{vX0}")
            P(f"v_add_u32 v{vXc1}, s{sT2}, v{vX1}")
            for k in range(nX):
                if k % 4 == 0: m0(sLX, Xslot(g['slot']) + k * 1024)
                v = vXc1 if (k & 1) else vXc0
                P(f"buffer_load_dwordx4 v{v}, {srd(sX)}, s{sCR+k} offen offset:{(k&3)*1024} lds"); n += 1
            for k in range(nW):
                if k % 4 == 0: m0(sLW, Wslot(g['slot']) + k * 1024)
                v = vWc1 if ((k >> 1) & 1) else vWc0
                P(f"buffer_load_dwordx4 v{v}, {srd(sWQ)}, s{sCW+k} offen offset:{(k&3)*1024} lds"); n += 1
        elif g['kind'] in ('k', 'v'):
            base = KB if g['kind'] == 'k' else Wslot(g['slot'])
            sb = sKT if (g['kind'] == 'k' or g['arg'] == 0) else sVS
            rs = sK if g['kind'] == 'k' else sV
            for k in range(nW):
                if k % 4 == 0:
                    m0(sLW, base + k * 1024)
                    P(f"s_add_u32 s{sT1}, s{sb}, {k*1024}")
                P(f"buffer_load_dwordx4 v{vK0+(k&3)}, {srd(rs)}, s{sT1} offen offset:{(k&3)*1024} lds"); n += 1
        else:
            i = g['arg']
            emit_jh(P, sT1, i, sT2)
            P(f"s_lshl_b32 s{sT2}, s{sO}, 3")
            P(f"s_add_u32 s{sT1}, s{sT1}, s{sT2}")
            P(f"s_lshl_b32 s{sT1}, s{sT1}, 17")
            P(f"v_add_u32 v{vOc0}, s{sT1}, v{vO0}")
            P(f"v_add_u32 v{vOc1}, s{sT1}, v{vO1}")
            for k in range(nW):
                if k % 4 == 0: m0(sLW, Wslot(g['slot']) + k * 1024)
                v = vOc1 if (k & 1) else vOc0
                P(f"buffer_load_dwordx4 v{v}, {srd(sWO)}, s{sCR+k} offen offset:{(k&3)*1024} lds"); n += 1
        total += n
        issued.append(total)
    p = 0
    for k in range(NBAR):
        tgt = idx[need[k]] if k in need else p - 1
        lim = min(tgt + cfg.LA, len(groups) - 1)
        while p <= lim and groups[p]['after'] <= k - 1:
            issue(groups[p]); p += 1
        assert p > tgt, (k, need.get(k))
        if k in need:
            n = total - issued[tgt]
            assert n <= 63, n
            P(f"s_waitcnt vmcnt({n})")
        P(f"s_barrier")
    assert p == len(groups)
    P("s_endpgm")
    return P

ACC = 16; ART = 48; BX = 80; KF = 96; VF = 160; PF = 96
aW = 224; aX = 240; aV = 242; aO = 246; aF = 248; aFw = 252; vL16 = 253
BQ = 48; SACC = 64
WR = [48, 52, 56, 60, 80, 84, 88, 92]
ATMP = 64
OACC = 16; RSL = 32

class Item:
    def __init__(self, text, loads=(), post=(), pre=()):
        self.text = text; self.loads = list(loads); self.post = list(post); self.pre = list(pre)

class Load:
    def __init__(self, text, tag, not_before=-1, bar=False, early=0):
        self.text = text; self.tag = tag; self.not_before = not_before; self.bar = bar; self.early = early

def run_pipe(P, lds, items, loads, dmax=6, per_gap=3):
    first = {}
    for n, it in enumerate(items):
        for t in it.loads: first.setdefault(t, n)
    li = 0
    for n, it in enumerate(items):
        cnt = 0
        while li < len(loads):
            L = loads[li]
            if L.bar:
                nxt = next((x for x in loads[li+1:] if not x.bar), None)
                fu = first.get(nxt.tag, n) if nxt else n
                if L.not_before < n and (fu - n <= dmax + (nxt.early if nxt else 0)):
                    P("s_barrier"); li += 1; continue
                if fu <= n: raise RuntimeError("barrier blocked")
                break
            fu = first.get(L.tag, 10**9)
            forced = fu <= n
            if L.not_before >= n:
                assert not forced, (L.text, n)
                break
            if not forced:
                if fu - n > dmax + L.early: break
                if lds.outstanding() >= lds.maxout: break
                if cnt >= per_gap: break
            lds.issue(L.text, L.tag); cnt += 1; li += 1
        for t in it.pre: P(t)
        lds.wait(set(it.loads))
        P(it.text)
        for t in it.post:
            if callable(t): t()
            else: P(t)
    assert li == len(loads), (li, len(loads))

def mfma(d, a, b, c):
    cs = "0" if c is None else vr(c, 4)
    return f"v_mfma_f32_16x16x32_bf16 {vr(d,4)}, {vr(a,4)}, {vr(b,4)}, {cs}"

def dump(P, cfg, stage, regs):
    if cfg.DUMP != stage: return
    P(f"s_lshl_b32 s{sT0}, s2, 2")
    P(f"s_add_u32 s{sT0}, s{sT0}, s{sW}")
    P(f"s_lshl_b32 s{sT0}, s{sT0}, 14")
    P(f"s_add_u32 s{sT0}, s{sT0}, {DBG0 + cfg.WSOFF}")
    P("s_nop 7\ns_nop 7")
    for n, r in enumerate(regs):
        P(f"buffer_store_dwordx4 {vr(r,4)}, v{vL16}, {srd(sWS)}, s{sT0} offen offset:{(n%4)*1024}")
        if n % 4 == 3: P(f"s_add_u32 s{sT0}, s{sT0}, 4096")
    P("s_waitcnt vmcnt(0)")

NSTAMP = 12
def stamp(P, cfg, n):
    if cfg.STAMP: P(f"s_memrealtime s[{76+2*n}:{77+2*n}]")

def stamp_out(P, cfg):
    if not cfg.STAMP: return
    P("s_waitcnt lgkmcnt(0) vmcnt(0)")
    P("s_load_dwordx2 s[4:5], s[0:1], 48")
    P("s_waitcnt lgkmcnt(0)")
    P("s_mov_b32 s6, 256")
    P("s_mov_b32 s7, 0x20000")
    P("s_mov_b64 exec, 1")
    P(f"s_lshl_b32 s{sT0}, s2, 2")
    P(f"s_add_u32 s{sT0}, s{sT0}, s{sW}")
    P(f"s_lshl_b32 s{sT0}, s{sT0}, 6")
    P(f"s_add_u32 s{sT0}, s{sT0}, {STAMP0 + cfg.WSOFF}")
    P("v_mov_b32 v2, 0")
    for n in range(NSTAMP + 1):
        P(f"v_mov_b32 v1, s{76+2*n}")
        P(f"buffer_store_dword v1, v2, {srd(sWS)}, s{sT0} offen offset:{4*n}")
    P(f"s_cmp_lg_u32 s{sW}, 0")
    P("s_cbranch_scc1 L_stamp_done")
    for n in range(NSTAMP + 1):
        P(f"v_mov_b32 v1, s{76+2*n}")
        P(f"buffer_atomic_umax v1, v2, s[4:7], 0 offen offset:{4*n}")
    P("v_mov_b32 v1, s76")
    P("v_not_b32 v1, v1")
    P("buffer_atomic_umax v1, v2, s[4:7], 0 offen offset:60")
    P("L_stamp_done:")
    P("s_waitcnt vmcnt(0)")
    P("s_mov_b64 exec, -1")

def compute(cfg):
    P = Prog()
    lds = Lds(P, cfg.MAXOUT)
    P("s_waitcnt lgkmcnt(0)")
    P(f"s_lshl_b32 s{sT0}, s{sB}, 8")
    P(f"s_add_u32 s{sT0}, s{sT0}, {EPOCH0 + cfg.WSOFF}")
    P(f"s_load_dword s{sNONCE}, s[{sWS}:{sWS+1}], s{sT0}")
    P("v_and_b32 v1, 15, v0")
    P("v_lshrrev_b32 v2, 4, v0")
    P("v_bfe_u32 v3, v0, 2, 2")
    P("v_and_b32 v4, 3, v0")
    P(f"v_lshlrev_b32 v{vL16}, 4, v0")
    P("v_and_b32 v5, 1, v2")
    P("v_lshlrev_b32 v5, 2, v5")
    P("v_or_b32 v5, v5, v3")
    P("v_lshlrev_b32 v6, 3, v2")
    P("v_add_u32 v6, v6, v3")
    P("v_lshlrev_b32 v7, 8, v6")
    P("v_lshlrev_b32 v8, 5, v5")
    P("v_lshlrev_b32 v9, 3, v4")
    P("v_add3_u32 v7, v7, v8, v9")
    for u in range(8):
        P(f"v_xor_b32 v{aW+u}, {u<<5}, v7")
        P(f"v_add_u32 v{aW+8+u}, 0x10000, v{aW+u}")
    P("v_lshrrev_b32 v8, 1, v3")
    P("v_and_b32 v10, 1, v2")
    P("v_lshlrev_b32 v10, 1, v10")
    P("v_or_b32 v8, v8, v10")
    P(f"v_xor_b32 v8, s{sW}, v8")
    P("v_lshlrev_b32 v8, 5, v8")
    P("v_lshlrev_b32 v7, 7, v6")
    P(f"v_add3_u32 v{aO}, v7, v8, v9")
    P(f"v_add_u32 v{aO+1}, 0x10000, v{aO}")
    P(f"s_lshl_b32 s{sT0}, s{sW}, 11")
    P(f"s_add_u32 s{sT0}, s{sT0}, {XV}")
    P("v_lshrrev_b32 v8, 1, v1")
    P("v_xor_b32 v8, v8, v2")
    P("v_lshlrev_b32 v8, 4, v8")
    P("v_lshlrev_b32 v7, 7, v1")
    P(f"v_add3_u32 v{aX}, v7, v8, s{sT0}")
    P(f"v_xor_b32 v{aX+1}, 64, v{aX}")
    P("v_xor_b32 v8, v1, v2")
    P("v_lshlrev_b32 v8, 4, v8")
    P("v_lshlrev_b32 v7, 8, v1")
    P(f"v_add_u32 v{aV}, v7, v8")
    for s in range(1, 4):
        P(f"v_xor_b32 v{aV+s}, {s<<6}, v{aV}")
    for nt in range(4):
        P(f"s_add_u32 s{sT0}, s{sO}, {nt}")
        P(f"s_and_b32 s{sT0}, s{sT0}, 3")
        P(f"s_lshl_b32 s{sT0}, s{sT0}, 10")
        P(f"s_add_u32 s{sT0}, s{sT0}, {XV}")
        P(f"v_add_u32 v{aF+nt}, s{sT0}, v{vL16}")
    P(f"s_lshl_b32 s{sT0}, s{sW}, 10")
    P(f"s_add_u32 s{sT0}, s{sT0}, {XV}")
    P(f"v_add_u32 v{aFw}, s{sT0}, v{vL16}")
    aK = 8
    P("v_lshrrev_b32 v5, 1, v2")
    P("v_xor_b32 v5, v5, v1")
    P("v_lshlrev_b32 v5, 4, v5")
    P("v_and_b32 v6, 1, v2")
    P("v_lshlrev_b32 v6, 3, v6")
    P("v_lshlrev_b32 v7, 8, v1")
    P("v_add3_u32 v5, v5, v6, v7")
    P(f"v_add_u32 v5, {KB}, v5")
    for s in range(4):
        for sec in range(2):
            P(f"v_xor_b32 v{aK+2*s+sec}, {(4*s+2*sec)<<4}, v5")
    P("s_waitcnt lgkmcnt(0)")
    P(f"s_mul_i32 s{sNONCE}, s{sNONCE}, 0x9E3779B1")
    P(f"s_add_u32 s{sNONCE}, s{sNONCE}, 0x7F4A7C15")

    stamp(P, cfg, 1)
    items = []; loads = []
    nring = 8
    kl = []
    for kt in range(4):
        for s in range(4):
            for sec in range(2):
                kl.append(Load(f"ds_read_b64 {vr(KF + (kt*4+s)*4 + 2*sec, 2)}, v{aK+2*s+sec} offset:{kt*4096}", ('K', kt, s, sec), early=10**6))
    kli = 0
    n = 0
    for i in range(8):
        slot = i % 6
        rng = 0 if slot < 4 else 1
        wb = Wslot(slot) - (0x10000 if rng else 0)
        loads.append(Load(None, None, bar=True))
        for t in range(2):
            bslot = (2 * i + t) % 3
            for u in range(8):
                a = ART + 4 * (n % nring)
                nb = n - nring
                need = []
                if u == 0:
                    tg = ('B', i, t)
                    loads.append(Load(f"ds_read_b128 {vr(BX+4*bslot,4)}, v{aX+t} offset:{Xslot(slot)-XV}", tg, not_before=n-17))
                for hf in range(2):
                    tg = ('A', i, t, u, hf)
                    loads.append(Load(f"ds_read_b64_tr_b16 {vr(a+2*hf,2)}, v{aW+8*rng+u} offset:{wb + t*8192 + hf*1024}", tg, not_before=nb))
                    need.append(tg)
                need.append(('B', i, t))
                if i in (5, 6) and kli < len(kl):
                    for _ in range(1):
                        L = kl[kli]; kli += 1
                        L.early = 0; L.tag2 = L.tag
                        loads.append(L)
                first = (i == 0 and t == 0)
                items.append(Item(mfma(ACC+4*u, a, BX+4*bslot, None if first else ACC+4*u), loads=need))
                n += 1
    assert kli == len(kl)
    run_pipe_k(P, lds, items, loads, hook0=(lambda: (stamp(P, cfg, 2), P('s_waitcnt lgkmcnt(0)')) and None) if cfg.STAMP else None)

    stamp(P, cfg, 3)
    for s in range(4):
        P(f"v_cvt_pk_bf16_f32 v{BQ+4*s+0}, v{ACC+8*s+0}, v{ACC+8*s+1}")
        P(f"v_cvt_pk_bf16_f32 v{BQ+4*s+1}, v{ACC+8*s+2}, v{ACC+8*s+3}")
        P(f"v_cvt_pk_bf16_f32 v{BQ+4*s+2}, v{ACC+8*s+4}, v{ACC+8*s+5}")
        P(f"v_cvt_pk_bf16_f32 v{BQ+4*s+3}, v{ACC+8*s+6}, v{ACC+8*s+7}")
    dump(P, cfg, 'Q', [BQ + 4*s for s in range(4)])
    lds.waitn(0)
    P("s_barrier")
    for kt in range(4):
        for s in range(4):
            P(mfma(SACC+4*kt, KF+(kt*4+s)*4, BQ+4*s, None if s == 0 else SACC+4*kt))
            n = kt*4+s
            lds.issue(f"ds_read_b128 {vr(VF+(n//4*0+ (n%4)*0)+4*(kt*4+s),4)}, v{aV+s} offset:{Wslot(2)+kt*4096}", ('V', 0, kt, s))
    dump(P, cfg, 'S', [SACC + 4*k for k in range(4)])
    c = (128 ** -0.5) * 1.4426950408889634
    import struct
    cbits = struct.unpack('<I', struct.pack('<f', c))[0]
    P(f"s_mov_b32 s{sT1}, {cbits:#x}")
    S = lambda k: f"v{SACC+k}"
    P(f"v_max3_f32 v1, {S(0)}, {S(1)}, {S(2)}")
    P(f"v_max3_f32 v2, {S(3)}, {S(4)}, {S(5)}")
    P(f"v_max3_f32 v3, {S(6)}, {S(7)}, {S(8)}")
    P(f"v_max3_f32 v4, {S(9)}, {S(10)}, {S(11)}")
    P(f"v_max3_f32 v5, {S(12)}, {S(13)}, {S(14)}")
    P(f"v_max3_f32 v1, v1, v2, {S(15)}")
    P(f"v_max3_f32 v3, v3, v4, v5")
    P(f"v_max_f32 v1, v1, v3")
    P("v_mov_b32 v2, v1")
    P("v_permlane16_swap_b32 v1, v2")
    P("v_max_f32 v1, v1, v2")
    P("v_mov_b32 v2, v1")
    P("v_permlane32_swap_b32 v1, v2")
    P("v_max_f32 v1, v1, v2")
    P(f"v_mul_f32 v1, s{sT1}, v1")
    for k in range(16):
        P(f"v_fma_f32 {S(k)}, {S(k)}, s{sT1}, -v1")
    for k in range(16):
        P(f"v_exp_f32 {S(k)}, {S(k)}")
    P(f"v_add_f32 v1, {S(0)}, {S(1)}")
    P(f"v_add_f32 v2, {S(2)}, {S(3)}")
    P(f"v_add_f32 v3, {S(4)}, {S(5)}")
    P(f"v_add_f32 v4, {S(6)}, {S(7)}")
    for q in range(2):
        P(f"v_add_f32 v1, v1, {S(8+4*q)}")
        P(f"v_add_f32 v2, v2, {S(9+4*q)}")
        P(f"v_add_f32 v3, v3, {S(10+4*q)}")
        P(f"v_add_f32 v4, v4, {S(11+4*q)}")
    P("v_add_f32 v1, v1, v2")
    P("v_add_f32 v3, v3, v4")
    P("v_add_f32 v1, v1, v3")
    P("v_mov_b32 v2, v1")
    P("v_permlane16_swap_b32 v1, v2")
    P("v_add_f32 v1, v1, v2")
    P("v_mov_b32 v2, v1")
    P("v_permlane32_swap_b32 v1, v2")
    P("v_add_f32 v1, v1, v2")
    P("v_rcp_f32 v1, v1")
    for k in range(16):
        P(f"v_mul_f32 {S(k)}, {S(k)}, v1")
    for k in range(8):
        P(f"v_cvt_pk_bf16_f32 v{PF+k}, {S(2*k)}, {S(2*k+1)}")
    sPO = 64
    P(f"s_lshl_b32 s{sPO}, s{sB}, 5")
    P(f"s_add_u32 s{sPO}, s{sPO}, s{sH}")
    P(f"s_lshl_b32 s{sPO}, s{sPO}, 2")
    P(f"s_add_u32 s{sPO}, s{sPO}, s{sW}")
    P(f"s_lshl_b32 s{sPO}, s{sPO}, 11")
    P(f"s_add_u32 s{sPO}, s{sPO}, {PBASE + cfg.WSOFF}")
    P(f"buffer_store_dwordx4 {vr(PF,4)}, v{vL16}, {srd(sWS)}, s{sPO} offen sc1")
    P(f"buffer_store_dwordx4 {vr(PF+4,4)}, v{vL16}, {srd(sWS)}, s{sPO} offen offset:1024 sc1")
    stamp(P, cfg, 4)
    dump(P, cfg, 'P', [PF, PF+4])

    sFL = 65
    P(f"s_lshl_b32 s{sFL}, s{sB}, 2")
    P(f"s_add_u32 s{sFL}, s{sFL}, s{sO}")
    P(f"s_lshl_b32 s{sFL}, s{sFL}, 2")
    P(f"s_add_u32 s{sFL}, s{sFL}, s{sW}")
    P(f"s_lshl_b32 s{sFL}, s{sFL}, 7")
    P(f"s_add_u32 s{sFL}, s{sFL}, {FLAG0 + cfg.WSOFF}")

    def publish_flag():
        P.comment("publish P flag")
        P("s_waitcnt vmcnt(0)")
        P(f"s_lshl_b32 s{sT0}, s{sJ}, 2")
        P(f"s_add_u32 s{sT0}, s{sT0}, s{sFL}")
        P(f"v_mov_b32 v1, s{sNONCE}")
        P("v_mov_b32 v2, 0")
        P("s_mov_b64 exec, 1")
        P(f"buffer_store_dword v1, v2, {srd(sWS)}, s{sT0} offen sc1")
        P("s_mov_b64 exec, -1")
    def poll_and_load():
        P.comment("poll P flags, then load P fragments")
        stamp(P, cfg, 5)
        P("v_and_b32 v2, 7, v0")
        P("v_lshlrev_b32 v2, 2, v2")
        P(f"s_mov_b32 s{sT2}, {cfg.SPIN}")
        P("L_poll1:")
        P(f"buffer_load_dword v1, v2, {srd(sWS)}, s{sFL} offen sc1")
        P(f"s_sub_u32 s{sT2}, s{sT2}, 1")
        P("s_waitcnt vmcnt(0)")
        P(f"v_cmp_ne_u32 vcc, s{sNONCE}, v1")
        P(f"s_cmp_eq_u32 s{sT2}, 0")
        P("s_cbranch_scc1 L_poll1_done")
        P("s_cbranch_vccnz L_poll1")
        P("L_poll1_done:")
        stamp(P, cfg, 6)
        for i in range(1, 8):
            emit_jh(P, sT0, i, sT1)
            P(f"s_sub_u32 s{sT0}, s{sT0}, s{sJ}")
            P(f"s_lshl_b32 s{sT0}, s{sT0}, 13")
            P(f"s_add_u32 s{sT0}, s{sT0}, s{sPO}")
            P(f"buffer_load_dwordx4 {vr(PF+8*i,4)}, v{vL16}, {srd(sWS)}, s{sT0} offen sc1")
            P(f"buffer_load_dwordx4 {vr(PF+8*i+4,4)}, v{vL16}, {srd(sWS)}, s{sT0} offen offset:1024 sc1")

    items = []; loads = []
    VACC = [16, 32]
    def vw_post(i):
        va = VACC[i & 1]
        out = []
        for sp in range(2):
            for k in range(2):
                out.append(f"v_cvt_pk_bf16_f32 v{ATMP+4*sp+2*k}, v{va+8*sp+4*k}, v{va+8*sp+4*k+1}")
                out.append(f"v_cvt_pk_bf16_f32 v{ATMP+4*sp+2*k+1}, v{va+8*sp+4*k+2}, v{va+8*sp+4*k+3}")
        return out
    def vw_write(i, sp):
        return lambda: lds.issue(f"ds_write_b128 v{aFw}, {vr(ATMP+4*sp,4)} offset:{8192*i + 4096*sp}", ('W', i, sp))
    wslot = [3, 4, 5, 0, 2, 3, 4, 5]
    n = 0; fr = 0
    for i in range(8):
        slot = wslot[i]
        rng = 0 if slot < 4 else 1
        wb = Wslot(slot) - (0x10000 if rng else 0)
        loads.append(Load(None, None, bar=True))
        for s in range(4):
            wr = WR[fr % 8]
            nb = (fr - 8) * 4 + 3 if fr >= 8 else -1
            for hf in range(2):
                loads.append(Load(f"ds_read_b64_tr_b16 {vr(wr+2*hf,2)}, v{aO+rng} offset:{wb + s*4096 + hf*512}", ('O', i, s, hf), not_before=nb))
            for kt in range(4):
                need = [('O', i, s, 0), ('O', i, s, 1)]
                if i == 0: need.append(('V', 0, kt, s))
                if i == 4:
                    tg = ('V', 1, kt, s)
                    loads.append(Load(f"ds_read_b128 {vr(VF+4*(kt*4+s),4)}, v{aV+s} offset:{Wslot(1)+kt*4096}", tg, not_before=n-16))
                    need.append(tg)
                post = []; pre = []
                if i >= 1 and s == 0 and kt == 3: post += vw_post(i-1)
                if i >= 1 and s == 1 and kt == 0: post += [vw_write(i-1, 0), vw_write(i-1, 1)]
                if s == 1 and kt == 2 and i == cfg.PFLAG_AT: post.append(publish_flag)
                if s == 1 and kt == 2 and i == cfg.POLL_AT: post.append(poll_and_load)
                items.append(Item(mfma(VACC[i&1]+4*kt, VF+4*(kt*4+s), wr, None if s == 0 else VACC[i&1]+4*kt), loads=need, post=post))
                n += 1
            fr += 1
    run_pipe(P, lds, items, loads, dmax=12, per_gap=2)
    for t in vw_post(7): P(t)
    vw_write(7, 0)(); vw_write(7, 1)()
    if cfg.DUMP == 'VW':
        pass
    lds.waitn(0)
    stamp(P, cfg, 7)
    P("s_barrier")
    if cfg.DUMP == 'VW':
        for n_, (i, sp, nt) in enumerate([(i, sp, nt) for i in range(2) for sp in range(2) for nt in range(4)]):
            P(f"ds_read_b128 {vr(VF+4*n_,4)}, v{aF+nt} offset:{8192*i+4096*sp}")
        P("s_waitcnt lgkmcnt(0)")
        dump(P, cfg, 'VW', [VF+4*k for k in range(16)])
    P("s_waitcnt vmcnt(0)")
    stamp(P, cfg, 8)
    dump(P, cfg, 'PALL', [PF+4*k for k in range(16)])
    items = []; loads = []
    n = 0
    order = [(i, sp, nt) for i in range(7) for sp in range(2) for nt in range(4)]
    order += [(7, sp, nt) for nt in (1, 2, 3, 0) for sp in range(2)]
    started = set()
    sTG = 68
    P(f"s_and_b32 s{sTG}, s{sNONCE}, 0xfff")
    P(f"s_bfe_u32 s{sTG+1}, s{sNONCE}, 0xc000c")
    P(f"s_lshr_b32 s{sTG+2}, s{sNONCE}, 24")
    P(f"s_or_b32 s{sTG+2}, s{sTG+2}, 0xa00")
    P(f"s_mul_i32 s{sTG+3}, s{sNONCE}, 0x85EBCA6B")
    P(f"s_lshr_b32 s{sTG+3}, s{sTG+3}, 20")
    P("v_mov_b32 v15, 0xfff")
    sRB = 66
    P(f"s_lshl_b32 s{sRB}, s{sB}, 3")
    P(f"s_add_u32 s{sRB}, s{sRB}, s{sJ}")
    P(f"s_lshl_b32 s{sRB}, s{sRB}, 16")
    P(f"s_lshl_b32 s{sT0}, s{sW}, 10")
    P(f"s_add_u32 s{sRB}, s{sRB}, s{sT0}")
    P(f"s_add_u32 s{sRB}, s{sRB}, {RBASE + cfg.WSOFF}")
    def rs_store(nt):
        def f():
            P.comment(f"RS store tile {nt}")
            P(f"s_add_u32 s{sT0}, s{sO}, {nt}")
            P(f"s_and_b32 s{sT0}, s{sT0}, 3")
            P(f"s_lshl_b32 s{sT0}, s{sT0}, 2")
            P(f"s_add_u32 s{sT0}, s{sT0}, s{sO}")
            P(f"s_lshl_b32 s{sT0}, s{sT0}, 12")
            P(f"s_add_u32 s{sT0}, s{sT0}, s{sRB}")
            for e in range(4):
                P(f"v_bfi_b32 v{OACC+4*nt+e}, v15, s{sTG+e}, v{OACC+4*nt+e}")
            P(f"buffer_store_dwordx4 {vr(OACC+4*nt,4)}, v{vL16}, {srd(sWS)}, s{sT0} offen sc1")
        return f
    for (i, sp, nt) in order:
        a = WR[n % 8]
        tg = ('F', i, sp, nt)
        loads.append(Load(f"ds_read_b128 {vr(a,4)}, v{aF+nt} offset:{8192*i+4096*sp}", tg, not_before=n-8))
        first = nt not in started; started.add(nt)
        items.append(Item(mfma(OACC+4*nt, a, PF+8*i+4*sp, None if first else OACC+4*nt), loads=[tg]))
        n += 1
    run_pipe(P, lds, items, loads, dmax=6, per_gap=2)
    dump(P, cfg, 'O', [OACC + 4*k for k in range(4)])
    stamp(P, cfg, 9)
    for nt in (1, 2, 3): rs_store(nt)()
    for k in range(1, 4):
        P(f"s_add_u32 s{sT0}, s{sO}, {k}")
        P(f"s_and_b32 s{sT0}, s{sT0}, 3")
        P(f"s_lshl_b32 s{sT1}, s{sO}, 2")
        P(f"s_add_u32 s{sT0}, s{sT0}, s{sT1}")
        P(f"s_lshl_b32 s{sT0}, s{sT0}, 12")
        P(f"s_add_u32 s{72+k}, s{sT0}, s{sRB}")
    P(f"s_mov_b32 s{sT2}, {cfg.SPIN}")
    P("L_poll2:")
    for k in range(1, 4):
        P(f"buffer_load_dwordx4 {vr(RSL+4*(k-1),4)}, v{vL16}, {srd(sWS)}, s{72+k} offen sc1")
    P(f"s_sub_u32 s{sT2}, s{sT2}, 1")
    P("s_waitcnt vmcnt(0)")
    for e in range(4):
        P(f"v_xor_b32 v{1+e}, s{sTG+e}, v{RSL+e}")
    for k in range(1, 3):
        for e in range(4):
            P(f"v_xor_b32 v5, s{sTG+e}, v{RSL+4*k+e}")
            P(f"v_or_b32 v{1+e}, v{1+e}, v5")
    P("v_or3_b32 v1, v1, v2, v3")
    P("v_or_b32 v1, v1, v4")
    P("v_and_b32 v1, v15, v1")
    P("v_cmp_ne_u32 vcc, 0, v1")
    P(f"s_cmp_eq_u32 s{sT2}, 0")
    P("s_cbranch_scc1 L_poll2_done")
    P("s_cbranch_vccnz L_poll2")
    P("L_poll2_done:")
    stamp(P, cfg, 10)
    for e in range(4):
        P(f"v_add_f32 v{OACC+e}, v{OACC+e}, v{RSL+e}")
        P(f"v_add_f32 v{RSL+4+e}, v{RSL+4+e}, v{RSL+8+e}")
    for e in range(4):
        P(f"v_add_f32 v{OACC+e}, v{OACC+e}, v{RSL+4+e}")
    P(f"v_cvt_pk_bf16_f32 v2, v{OACC}, v{OACC+1}")
    P(f"v_cvt_pk_bf16_f32 v3, v{OACC+2}, v{OACC+3}")
    P("v_and_b32 v4, 15, v0")
    P("v_lshrrev_b32 v5, 4, v0")
    P("v_lshlrev_b32 v4, 10, v4")
    P("v_lshlrev_b32 v5, 3, v5")
    P("v_add_u32 v4, v4, v5")
    P(f"s_lshl_b32 s{sT0}, s{sB}, 16")
    P(f"s_lshl_b32 s{sT1}, s{sW}, 14")
    P(f"s_add_u32 s{sT0}, s{sT0}, s{sT1}")
    P(f"s_lshl_b32 s{sT1}, s{sJ}, 7")
    P(f"s_add_u32 s{sT0}, s{sT0}, s{sT1}")
    P(f"s_lshl_b32 s{sT1}, s{sO}, 5")
    P(f"s_add_u32 s{sT0}, s{sT0}, s{sT1}")
    P(f"buffer_store_dwordx2 v[2:3], v4, {srd(sOUT)}, s{sT0} offen")
    if cfg.STAMP:
        P("s_waitcnt vmcnt(0)")
        stamp(P, cfg, 11)
        P(f"s_mov_b32 s{76+24}, s{sT2}")
        stamp_out(P, cfg)
    P(f"s_or_b32 s{sT0}, s{sO}, s{sJ}")
    P(f"s_or_b32 s{sT0}, s{sT0}, s{sW}")
    P(f"s_cmp_lg_u32 s{sT0}, 0")
    P("s_cbranch_scc1 L_end")
    P(f"s_lshl_b32 s{sT0}, s{sB}, 8")
    P(f"s_add_u32 s{sT0}, s{sT0}, {EPOCH0 + cfg.WSOFF}")
    P(f"v_mov_b32 v1, s{sNONCE}")
    P("v_mov_b32 v5, 0")
    P("s_mov_b64 exec, 1")
    P(f"buffer_store_dword v1, v5, {srd(sWS)}, s{sT0} offen")
    return P

def run_pipe_k(P, lds, items, loads, dmax=6, per_gap=3, hook0=None):
    first = {}
    for n, it in enumerate(items):
        for t in it.loads: first.setdefault(t, n)
    li = 0
    for n, it in enumerate(items):
        cnt = 0
        while li < len(loads):
            L = loads[li]
            if L.bar:
                nxt = next((x for x in loads[li+1:] if not x.bar), None)
                fu = first.get(nxt.tag, n)
                if fu - n <= dmax:
                    P("s_barrier"); li += 1
                    if n == 0 and hook0: hook0()
                    continue
                break
            fu = first.get(L.tag, None)
            if fu is None:
                if lds.outstanding() >= lds.maxout and not any(first.get(x.tag, 10**9) <= n for x in loads[li:li+6]): break
                lds.issue(L.text, L.tag); li += 1; continue
            forced = fu <= n
            if L.not_before >= n:
                assert not forced, (L.text, n)
                break
            if not forced:
                if fu - n > dmax: break
                if lds.outstanding() >= lds.maxout: break
                if cnt >= per_gap: break
            lds.issue(L.text, L.tag); cnt += 1; li += 1
        lds.wait(set(it.loads))
        P(it.text)
    while li < len(loads):
        L = loads[li]; assert not L.bar; lds.issue(L.text, L.tag); li += 1

def build(cfg):
    P = Prog()
    prologue(P, cfg)
    C = compute(cfg)
    Ld = loader(cfg)
    assert C.nbar == Ld.nbar, (C.nbar, Ld.nbar)
    P.extend(C)
    P("L_end:")
    P("s_endpgm")
    P.extend(Ld)
    ins, nadd = fix_hazards(P.ins)
    nthreads = 256 + 64 * cfg.NL
    head = f"""; Fused GQA block: Q-projection + attention probabilities, V*Wo precompute, output projection.
; @launch grid=(256,1,1) block=({nthreads},1,1) lds={LDS_BYTES}
.amdgcn_target "amdgcn-amd-amdhsa--gfx950"
.text
.globl {KNAME}
.p2align 8
.type {KNAME},@function
{KNAME}:
"""
    tail = f""".section .rodata,"a"
.p2align 6
.amdhsa_kernel {KNAME}
  .amdhsa_next_free_vgpr 256
  .amdhsa_next_free_sgpr 102
  .amdhsa_accum_offset 256
  .amdhsa_group_segment_fixed_size 0
  .amdhsa_kernarg_size 64
  .amdhsa_user_sgpr_count 2
  .amdhsa_user_sgpr_kernarg_segment_ptr 1
  .amdhsa_system_sgpr_workgroup_id_x 1
.end_amdhsa_kernel
"""
    return head + render(ins) + tail, nadd, len([i for i in ins if i.kind != 'pseudo'])

if __name__ == "__main__":
    ap = argparse.ArgumentParser()
    ap.add_argument("-o", default="k.s")
    ap.add_argument("--set", action="append", default=[])
    a = ap.parse_args()
    cfg = Cfg()
    for kv in a.set:
        k, v = kv.split("=")
        cur = getattr(cfg, k)
        setattr(cfg, k, v if (cur is None or isinstance(cur, str)) else type(cur)(int(v, 0)))
    s, nadd, nins = build(cfg)
    open(a.o, "w").write(s)
    print(f"wrote {a.o}: {nins} instructions, {nadd} nop states added")
```
